```python
import torch

def _softmax(x, axis=-1):
    return torch.softmax(x, dim=axis)
def _gelu(x):
    return torch.nn.functional.gelu(x, approximate="tanh")
def _silu(x):
    return torch.nn.functional.silu(x)
def _sigmoid(x):
    return torch.sigmoid(x)
def _layernorm(x, axis=-1, eps=1e-5):
    m = x.mean(dim=axis, keepdim=True)
    v = x.var(dim=axis, keepdim=True, unbiased=False)
    return (x - m) / torch.sqrt(v + eps)
def _scatter_add(tgt, idx, src, axis=0):
    return tgt.clone().index_add_(axis, idx, src)
def _segment_sum(src, seg, n):
    out = torch.zeros((n,) + src.shape[1:], dtype=src.dtype)
    return out.index_add_(0, seg, src)
def _pad(x, pw):
    flat = tuple(v for pair in reversed(pw) for v in pair)
    return torch.nn.functional.pad(x, flat)

kernel_name = 'standalone__mha_block_cached__near_ridge'

def setup_inputs():

    _w = (lambda a: (lambda t: t.to(torch.bfloat16) if t.is_floating_point() else t)(torch.as_tensor(a)))
    B, Sq, D = 8, 144, 576
    H, Sk, Dh = 32, 512, 128
    return {
        "x": _w((lambda *s: torch.randn(*s, dtype=torch.bfloat16) * 0.8)(B, Sq, D)),
        "k_cache": _w((lambda *s: torch.randn(*s, dtype=torch.bfloat16) * 0.8)(B, H, Sk, Dh)),
        "v_cache": _w((lambda *s: torch.randn(*s, dtype=torch.bfloat16) * 0.05)(B, H, Sk, Dh)),
        "wq": _w((lambda *s: torch.randn(*s, dtype=torch.bfloat16) * 0.8)(D, H * Dh) * (D ** -0.5)),
        "wo": _w((lambda *s: torch.randn(*s, dtype=torch.bfloat16) * 0.05)(H * Dh, D) * ((H * Dh) ** -0.5)),
    }

def reference(x, k_cache, v_cache, wq, wo):
    B, Sq, D = x.shape
    H, Dh = 32, 128
    q = (lambda x, *d: x.permute(*d))((x @ wq).reshape(B, Sq, H, Dh), 0, 2, 1, 3)
    scores = torch.einsum("bhqd,bhkd->bhqk", q, k_cache) * (Dh ** -0.5)
    p = _softmax(scores, axis=-1)
    o = torch.einsum("bhqk,bhkd->bhqd", p, v_cache)
    return (lambda x, *d: x.permute(*d))(o, 0, 2, 1, 3).reshape(B, Sq, H * Dh) @ wo
```

```python
import math, sys

L = []
def e(s): L.append("    " + s)
def lab(s): L.append(s + ":")
def cm(s): L.append("    ; " + s)
_lc = [0]
def newlab(p="L"):
    _lc[0] += 1
    return f".{p}{_lc[0]}"

def vr(a, n=4): return f"v[{a}:{a+n-1}]"

def pipe(reads, mms, look=10, maxout=14):
    ri = 0
    done = 0
    for mi, (mt, need) in enumerate(mms):
        while ri < len(reads) and ri <= need + look and reads[ri][1] < mi and (ri - done) < maxout:
            e(reads[ri][0]); ri += 1
        assert ri > need, (ri, need, mi)
        if need + 1 > done:
            e(f"s_waitcnt lgkmcnt({ri - 1 - need})")
            done = need + 1
        e(mt)
    assert ri == len(reads), (ri, len(reads))

A_SL = [0, 16384, 32768, 49152, 65536]
W_SL = [81920, 98304, 114688]
X_SL = 131072
MAXB = 149504
LDS1 = 151552
QBUF = W_SL[0]
QSTR = 272
P9B = W_SL[1]
K_SLOT = A_SL + [X_SL, W_SL[0], W_SL[1]]
V_SLOT = [W_SL[2]] + A_SL + [X_SL, W_SL[0]]
WS_O = 0
WS_WO = 0x1000000
WS_SIZE = 0x2000000
SCALE_LOG2E = math.log2(math.e) / math.sqrt(128.0)
import struct
def f32bits(x): return struct.unpack("<I", struct.pack("<f", x))[0]

SX, SK, SV, SWQ, SWO, SWS = 20, 24, 28, 32, 36, 40
sW, sA, sWB, sT, sT2, sQG, sKH, sB, sH, sC = 44, 45, 46, 47, 48, 49, 50, 51, 52, 53
sMT, sKS, sSUB, sT3 = 54, 55, 56, 57

def srd(s): return f"s[{s}:{s+3}]"

def kernel1():
    L.append(".globl attn_kernel")
    L.append(".p2align 8")
    L.append(".type attn_kernel,@function")
    lab("attn_kernel")
    e("s_cmp_ge_u32 s2, 256")
    e("s_cbranch_scc1 .Lk1_end")
    e("s_load_dwordx16 s[4:19], s[0:1], 0")
    e("v_lshrrev_b32 v1, 6, v0")
    e("v_and_b32 v0, 63, v0")
    e(f"v_readfirstlane_b32 s{sW}, v1")
    e(f"s_and_b32 s{sT}, s2, 7")
    e(f"s_lshr_b32 s{sT2}, s2, 3")
    e(f"s_and_b32 s{sH}, s{sT2}, 3")
    e(f"s_lshl_b32 s{sH}, s{sH}, 3")
    e(f"s_add_u32 s{sH}, s{sH}, s{sT}")
    e(f"s_lshr_b32 s{sB}, s{sT2}, 2")
    e(f"s_and_b32 s{sA}, s{sW}, 3")
    e(f"s_lshr_b32 s{sKH}, s{sW}, 2")
    e(f"s_lshl_b32 s{sWB}, s{sA}, 12")
    e("s_waitcnt lgkmcnt(0)")
    e(f"s_mul_i32 s{sT}, s{sB}, 165888")
    e(f"s_add_u32 s{SX}, s4, s{sT}")
    e(f"s_addc_u32 s{SX+1}, s5, 0")
    e(f"s_mov_b32 s{SX+2}, 165888")
    e(f"s_mov_b32 s{SX+3}, 0x00020000")
    e(f"s_lshl_b32 s{sT}, s{sB}, 5")
    e(f"s_add_u32 s{sT}, s{sT}, s{sH}")
    e(f"s_lshl_b32 s{sT}, s{sT}, 17")
    e(f"s_add_u32 s{SK}, s6, s{sT}")
    e(f"s_addc_u32 s{SK+1}, s7, 0")
    e(f"s_mov_b32 s{SK+2}, 131072")
    e(f"s_mov_b32 s{SK+3}, 0x00020000")
    e(f"s_add_u32 s{SV}, s8, s{sT}")
    e(f"s_addc_u32 s{SV+1}, s9, 0")
    e(f"s_mov_b32 s{SV+2}, 131072")
    e(f"s_mov_b32 s{SV+3}, 0x00020000")
    e(f"s_lshl_b32 s{sT}, s{sH}, 8")
    e(f"s_add_u32 s{SWQ}, s10, s{sT}")
    e(f"s_addc_u32 s{SWQ+1}, s11, 0")
    e(f"s_sub_u32 s{SWQ+2}, {576*8192}, s{sT}")
    e(f"s_mov_b32 s{SWQ+3}, 0x00020000")
    e(f"s_mov_b32 s{SWO}, s12")
    e(f"s_mov_b32 s{SWO+1}, s13")
    e(f"s_mov_b32 s{SWO+2}, {4096*1152}")
    e(f"s_mov_b32 s{SWO+3}, 0x00020000")
    e(f"s_mov_b32 s{SWS}, s18")
    e(f"s_mov_b32 s{SWS+1}, s19")
    e(f"s_mov_b32 s{SWS+2}, {WS_SIZE}")
    e(f"s_mov_b32 s{SWS+3}, 0x00020000")
    vI, vG, vRr, vC, vRR = 27, 28, 29, 30, 31
    e(f"v_and_b32 v{vI}, 15, v0")
    e(f"v_lshrrev_b32 v{vG}, 4, v0")
    e(f"v_bfe_u32 v{vRr}, v0, 2, 2")
    e(f"v_and_b32 v{vC}, 3, v0")
    e(f"v_lshlrev_b32 v26, 4, v0")
    e("v_mov_b32 v6, 0")
    e("v_mov_b32 v7, 0")
    e(f"s_mov_b32 s{sKS}, 0")
    e(f"s_mov_b32 s{sSUB}, 0")
    XO = 32
    e(f"s_lshl_b32 s{sT}, s{sW}, 4")
    e(f"v_add_u32 v1, s{sT}, v{vI}")
    e(f"v_mul_u32_u24 v1, 1152, v1")
    e(f"v_lshl_add_u32 v1, v{vG}, 4, v1")
    for j in range(18):
        e(f"buffer_load_dwordx4 {vr(XO+4*j)}, v1, {srd(SX)}, 0 offen offset:{j*64}")
    e(f"s_lshl_b32 s{sT}, s{sW}, 8")
    e(f"v_lshl_add_u32 v1, v0, 2, s{sT}")
    e("v_mov_b32 v2, 0xff800000")
    e(f"v_add_u32 v1, {MAXB}, v1")
    e("ds_write_b32 v1, v2")
    lB = newlab(); lJ = newlab()
    e(f"s_cmp_lt_u32 s{sW}, 4")
    e(f"s_cbranch_scc0 {lB}")
    cm("A-wave prologue")
    e(f"v_add_u32 v1, 128, v{vI}")
    e(f"v_mul_u32_u24 v1, 1152, v1")
    e(f"v_lshl_add_u32 v1, v{vG}, 4, v1")
    e(f"s_lshl_b32 s{sT}, s{sA}, 6")
    e(f"s_lshl_b32 s{sT2}, s{sA}, 10")
    for n in range(4):
        e(f"s_add_u32 m0, s{sT2}, {X_SL + n*4096}")
        e(f"s_add_u32 s{sT3}, s{sT}, {n*256}")
        e(f"buffer_load_dwordx4 v1, {srd(SX)}, s{sT3} offen lds")
    e(f"s_and_b32 s{sT}, s{sA}, 1")
    e(f"s_lshl_b32 s{sT2}, s{sT}, 10")
    e(f"s_lshl_b32 s{sT}, s{sT}, 6")
    e(f"s_add_u32 m0, s{sT2}, {X_SL + 16*1024}")
    e(f"s_add_u32 s{sT3}, s{sT}, {16*64}")
    e(f"buffer_load_dwordx4 v1, {srd(SX)}, s{sT3} offen lds")
    e(f"s_lshl_b32 s{sT}, s{sA}, 4")
    for ii in range(4):
        e(f"v_add_u32 v1, s{sT}, v{vG}")
        e(f"v_add_u32 v1, {4*ii}, v1")
        e(f"v_lshlrev_b32 v1, 13, v1")
        e(f"v_add_u32 v{2+ii}, {4*(ii>>1)}, v{vG}")
        e(f"v_lshlrev_b32 v{2+ii}, 1, v{2+ii}")
        e(f"v_xor_b32 v{2+ii}, v{2+ii}, v{vI}")
        e(f"v_lshl_add_u32 v{2+ii}, v{2+ii}, 4, v1")
    def dma_wq(c):
        slot = W_SL[c % 3]
        e(f"s_mov_b32 s{sT3}, {c*64*8192}")
        for ii in range(4):
            e(f"s_add_u32 m0, s{sWB}, {slot + ii*1024}")
            e("s_nop 0")
            e(f"buffer_load_dwordx4 v{2+ii}, {srd(SWQ)}, s{sT3} offen lds")
    for c in range(3): dma_wq(c)
    e(f"s_branch {lJ}")
    lab(lB)
    cm("B-wave prologue")
    e(f"s_lshl_b32 s{sT}, s{sA}, 4")
    for ii in range(4):
        e(f"v_add_u32 v1, {4*ii}, v{vG}")
        e(f"v_xor_b32 v{2+ii}, v1, v{vI}")
        e(f"v_add_u32 v1, s{sT}, v1")
        e(f"v_lshlrev_b32 v1, 8, v1")
        e(f"v_lshl_add_u32 v{2+ii}, v{2+ii}, 4, v1")
    for ii in range(2):
        e(f"v_add_u32 v1, {4*ii}, v{vG}")
        e(f"v_lshlrev_b32 v{6+ii}, 1, v1")
        e(f"v_xor_b32 v{6+ii}, v{6+ii}, v{vI}")
        e(f"v_add_u32 v1, s{sT}, v1")
        e(f"v_lshlrev_b32 v1, 8, v1")
        e(f"v_lshl_add_u32 v{6+ii}, v{6+ii}, 4, v1")
    def dma_k(c):
        slot = K_SLOT[c]
        e(f"s_mov_b32 s{sT3}, {c*16384}")
        for ii in range(4):
            e(f"s_add_u32 m0, s{sWB}, {slot + ii*1024}")
            e("s_nop 0")
            e(f"buffer_load_dwordx4 v{2+ii}, {srd(SK)}, s{sT3} offen lds")
    def dma_v(c):
        slot = V_SLOT[c]
        e(f"s_mov_b32 s{sT3}, {c*16384}")
        for ii in range(2):
            e(f"s_add_u32 m0, s{sWB}, {slot + ii*1024}")
            e("s_nop 0")
            e(f"buffer_load_dwordx4 v{6+ii}, {srd(SV)}, s{sT3} offen lds")
            e(f"buffer_load_dwordx4 v{6+ii}, {srd(SV)}, s{sT3} offen offset:2048 lds")
    for c in range(5): dma_k(c)
    lab(lJ)
    bq = ["K0", "K1", "K2", "K3", "K4"]
    def role(isA, fn):
        l = newlab()
        e(f"s_cmp_lt_u32 s{sW}, 4")
        e(f"s_cbranch_scc{0 if isA else 1} {l}")
        fn()
        lab(l)
    e(f"v_and_b32 v1, 1, v{vG}")
    e(f"v_lshl_add_u32 v{vRR}, v1, 2, v{vRr}")
    e(f"v_lshl_add_u32 v1, v{vG}, 3, v{vRr}")
    e(f"v_lshlrev_b32 v1, 8, v1")
    e(f"v_lshl_add_u32 v1, v{vC}, 3, v1")
    for dt in range(8):
        e(f"v_xor_b32 v{8+dt}, {dt}, v{vRR}")
        e(f"v_lshl_add_u32 v{8+dt}, v{8+dt}, 5, v1")
    e(f"v_xor_b32 v24, s{sW}, v{vRR}")
    e(f"v_lshl_add_u32 v24, v24, 5, v1")
    ACC = 104; ACC9 = 136; AF = 140; NAF = 18; X9F = 212
    for c in range(9):
        cm(f"Q-proj step {c}")
        if c == 0:
            role(True, lambda: e("s_waitcnt vmcnt(8)"))
            role(False, lambda: e("s_waitcnt vmcnt(20)"))
            e("s_waitcnt lgkmcnt(0)")
        else:
            role(True, lambda: e(f"s_waitcnt vmcnt({4 if c < 8 else 0})"))
        e("s_barrier")
        if 1 <= c <= 6:
            role(True, lambda: dma_wq(c + 2))
        slot = W_SL[c % 3]
        for dt in range(8):
            e(f"v_add_u32 v{16+dt}, {slot}, v{8+dt}")
        e(f"v_add_u32 v25, {slot}, v24")
        e(f"v_add_u32 v1, {X_SL}, v26")
        reads = []; mms = []
        lastuse = {}
        fb = [0]
        def rdfrag(addr, off):
            b = fb[0] % NAF; fb[0] += 1
            reg = AF + 4*b
            aft = lastuse.get(b, -1)
            reads.append((f"ds_read_b64_tr_b16 {vr(reg,2)}, v{addr} offset:{off}", aft))
            reads.append((f"ds_read_b64_tr_b16 {vr(reg+2,2)}, v{addr} offset:{off+1024}", aft))
            return b, reg
        for j in range(2):
            ks = 2*c + j
            for dt in range(8):
                b, reg = rdfrag(16+dt, j*8192)
                cc = vr(ACC+4*dt) if ks > 0 else "0"
                mms.append((f"v_mfma_f32_16x16x32_bf16 {vr(ACC+4*dt)}, {vr(reg)}, {vr(XO+4*ks)}, {cc}", len(reads)-1))
                lastuse[b] = len(mms)-1
            b, reg = rdfrag(25, j*8192)
            reads.append((f"ds_read_b128 {vr(X9F+4*j)}, v1 offset:{ks*1024}", -1))
            cc = vr(ACC9) if ks > 0 else "0"
            mms.append((f"v_mfma_f32_16x16x32_bf16 {vr(ACC9)}, {vr(reg)}, {vr(X9F+4*j)}, {cc}", len(reads)-1))
            lastuse[b] = len(mms)-1
        pipe(reads, mms)
    cm("Q exchange")
    e("s_barrier")
    role(False, lambda: dma_k(5)); bq.append("K5")
    e("s_nop 7")
    e(f"s_lshl_b32 s{sT}, s{sW}, 4")
    e(f"v_add_u32 v1, s{sT}, v{vI}")
    e(f"v_mul_u32_u24 v1, {QSTR}, v1")
    e(f"v_lshl_add_u32 v1, v{vG}, 3, v1")
    e(f"v_add_u32 v1, {QBUF}, v1")
    for dt in range(8):
        e(f"v_cvt_pk_bf16_f32 v{AF+2*dt}, v{ACC+4*dt}, v{ACC+4*dt+1}")
        e(f"v_cvt_pk_bf16_f32 v{AF+2*dt+1}, v{ACC+4*dt+2}, v{ACC+4*dt+3}")
        e(f"ds_write_b64 v1, {vr(AF+2*dt,2)} offset:{dt*32}")
    e(f"v_add_u32 v1, 128, v{vI}")
    e(f"v_mul_u32_u24 v1, {QSTR}, v1")
    e(f"v_lshl_add_u32 v1, v{vG}, 3, v1")
    e(f"s_lshl_b32 s{sT}, s{sW}, 5")
    e(f"s_add_u32 s{sT}, s{sT}, {QBUF}")
    e(f"v_add_u32 v1, s{sT}, v1")
    e(f"v_cvt_pk_bf16_f32 v{AF+16}, v{ACC9}, v{ACC9+1}")
    e(f"v_cvt_pk_bf16_f32 v{AF+17}, v{ACC9+2}, v{ACC9+3}")
    e(f"ds_write_b64 v1, {vr(AF+16,2)}")
    e("s_waitcnt lgkmcnt(0)")
    e("s_barrier")
    QF = 32
    e(f"s_lshl_b32 s{sT}, s{sA}, 5")
    e(f"v_add_u32 v1, s{sT}, v{vI}")
    e(f"v_mul_u32_u24 v1, {QSTR}, v1")
    e(f"v_lshl_add_u32 v1, v{vG}, 4, v1")
    e(f"v_add_u32 v1, {QBUF}, v1")
    for qt in range(2):
        for s in range(4):
            e(f"ds_read_b128 {vr(QF+(qt*4+s)*4)}, v1 offset:{qt*16*QSTR + s*64}")
    e(f"v_add_u32 v1, 128, v{vI}")
    e(f"v_mul_u32_u24 v1, {QSTR}, v1")
    e(f"v_lshl_add_u32 v1, v{vG}, 4, v1")
    e(f"v_add_u32 v1, {QBUF}, v1")
    for s in range(4):
        e(f"ds_read_b128 {vr(QF+32+s*4)}, v1 offset:{s*64}")
    e(f"s_lshl_b32 s{sT}, s{sKH}, 5")
    e(f"v_add_u32 v1, s{sT}, v{vI}")
    e(f"v_lshlrev_b32 v1, 8, v1")
    for s in range(4):
        e(f"v_add_u32 v{8+s}, {4*s}, v{vG}")
        e(f"v_xor_b32 v{8+s}, v{8+s}, v{vI}")
        e(f"v_lshl_add_u32 v{8+s}, v{8+s}, 4, v1")
    e("s_waitcnt lgkmcnt(0)")
    e("s_barrier")
    def f():
        dma_k(6); dma_k(7); dma_v(0)
    role(False, f); bq += ["K6", "K7", "V0"]
    SR = 80; S9 = 208; KF = 224
    for c in range(8):
        cm(f"QK step {c}")
        n = (len(bq) - 1 - bq.index(f"K{c}")) * 4
        role(False, lambda: e(f"s_waitcnt vmcnt({n})"))
        e("s_barrier")
        if c >= 1:
            role(False, lambda: dma_v(c)); bq.append(f"V{c}")
        slot = K_SLOT[c]
        for s in range(4):
            e(f"v_add_u32 v{16+s}, {slot}, v{8+s}")
        reads = []; mms = []
        for t in range(2):
            for s in range(4):
                reads.append((f"ds_read_b128 {vr(KF+(t*4+s)*4)}, v{16+s} offset:{t*4096}", -1))
        for t in range(2):
            kt = 2*c + t
            for s in range(4):
                for qt in range(2):
                    d = SR + (kt*2+qt)*4
                    cc = vr(d) if s > 0 else "0"
                    mms.append((f"v_mfma_f32_16x16x32_bf16 {vr(d)}, {vr(KF+(t*4+s)*4)}, {vr(QF+(qt*4+s)*4)}, {cc}", t*4+s))
        pipe(reads, mms)
        l = newlab()
        e(f"s_cmp_eq_u32 s{sA}, {c&3}")
        e(f"s_cbranch_scc0 {l}")
        for t in range(2):
            d = S9 + ((c>>2)*2+t)*4
            for s in range(4):
                cc = vr(d) if s > 0 else "0"
                e(f"v_mfma_f32_16x16x32_bf16 {vr(d)}, {vr(KF+(t*4+s)*4)}, {vr(QF+32+s*4)}, {cc}")
        lab(l)
    cm("softmax")
    e("s_nop 7")
    e("s_nop 1")
    def sreg(kt, qt, r): return SR + (kt*2+qt)*4 + r
    MX = [16, 17, 18]
    for qt in range(2):
        regs = [sreg(kt, qt, r) for kt in range(16) for r in range(4)]
        e(f"v_max3_f32 v{MX[qt]}, v{regs[0]}, v{regs[1]}, v{regs[2]}")
        k = 3
        while k + 1 < len(regs):
            e(f"v_max3_f32 v{MX[qt]}, v{MX[qt]}, v{regs[k]}, v{regs[k+1]}"); k += 2
        e(f"v_max_f32 v{MX[qt]}, v{MX[qt]}, v{regs[k]}")
    regs = [S9 + k for k in range(16)]
    e(f"v_max3_f32 v{MX[2]}, v{regs[0]}, v{regs[1]}, v{regs[2]}")
    k = 3
    while k + 1 < len(regs):
        e(f"v_max3_f32 v{MX[2]}, v{MX[2]}, v{regs[k]}, v{regs[k+1]}"); k += 2
    e(f"v_max_f32 v{MX[2]}, v{MX[2]}, v{regs[k]}")
    e(f"s_lshl_b32 s{sT}, s{sA}, 7")
    e(f"s_add_u32 s{sT}, s{sT}, {MAXB}")
    e(f"v_lshl_add_u32 v19, v{vI}, 2, s{sT}")
    e(f"v_lshlrev_b32 v20, 2, v{vI}")
    e(f"v_add_u32 v20, {MAXB + 512}, v20")
    e(f"ds_max_f32 v19, v{MX[0]}")
    e(f"ds_max_f32 v19, v{MX[1]} offset:64")
    e(f"ds_max_f32 v20, v{MX[2]}")
    e("s_waitcnt lgkmcnt(0)")
    e("s_barrier")
    e(f"ds_read_b32 v{MX[0]}, v19")
    e(f"ds_read_b32 v{MX[1]}, v19 offset:64")
    e(f"ds_read_b32 v{MX[2]}, v20")
    e(f"s_mov_b32 s{sC}, 0x{f32bits(SCALE_LOG2E):08x}")
    e("s_waitcnt lgkmcnt(0)")
    for q in range(3):
        e(f"v_mul_f32 v{MX[q]}, s{sC}, v{MX[q]}")
    def preg(c, qt): return 32 + (c*2+qt)*4 if c < 6 else 224 + ((c-6)*2+qt)*4
    for c in range(8):
        for qt in range(2):
            rs = [sreg(2*c+t, qt, r) for t in range(2) for r in range(4)]
            for x in rs:
                e(f"v_fma_f32 v{x}, v{x}, s{sC}, -v{MX[qt]}")
            for x in rs:
                e(f"v_exp_f32 v{x}, v{x}")
            p = preg(c, qt)
            e("s_nop 0")
            for k in range(4):
                e(f"v_cvt_pk_bf16_f32 v{p+k}, v{rs[2*k]}, v{rs[2*k+1]}")
    for k in range(16):
        e(f"v_fma_f32 v{S9+k}, v{S9+k}, s{sC}, -v{MX[2]}")
    for k in range(16):
        e(f"v_exp_f32 v{S9+k}, v{S9+k}")
    e("s_nop 0")
    for k in range(8):
        e(f"v_cvt_pk_bf16_f32 v{S9+k}, v{S9+2*k}, v{S9+2*k+1}")
    e(f"s_lshl_b32 s{sT}, s{sA}, 11")
    e(f"s_lshl_b32 s{sT2}, s{sKH}, 10")
    e(f"s_add_u32 s{sT}, s{sT}, s{sT2}")
    e(f"s_add_u32 s{sT}, s{sT}, {P9B}")
    e(f"v_add_u32 v1, s{sT}, v26")
    e(f"ds_write_b128 v1, {vr(S9)}")
    e(f"ds_write_b128 v1, {vr(S9+4)} offset:8192")
    e(f"s_lshl_b32 s{sT}, s{sKH}, 5")
    e(f"v_lshl_add_u32 v1, v{vG}, 2, v{vRr}")
    e(f"v_lshlrev_b32 v24, 8, v1")
    e(f"v_lshl_add_u32 v24, v{vC}, 3, v24")
    e(f"v_add_u32 v1, s{sT}, v1")
    e(f"v_lshlrev_b32 v1, 8, v1")
    e(f"v_lshl_add_u32 v1, v{vC}, 3, v1")
    for dt in range(8):
        e(f"v_xor_b32 v{8+dt}, {dt}, v{vRR}")
        e(f"v_lshl_add_u32 v{8+dt}, v{8+dt}, 5, v1")
    e(f"v_xor_b32 v1, s{sW}, v{vRR}")
    e(f"v_lshl_add_u32 v24, v1, 5, v24")
    ONES = 28
    e("s_waitcnt lgkmcnt(0)")
    for k in range(4):
        e(f"v_mov_b32 v{ONES+k}, 0x3f803f80")
    OA = 80; SM = 144; O9 = 152; SM9 = 156; VF = 160; NVF = 12; WT = 208; V9F = 240; P9F = 248
    def wo_setup():
        e(f"s_lshl_b32 s{sT}, s2, 2")
        e(f"s_add_u32 s{sT}, s{sT}, s{sA}")
        e(f"s_lshr_b32 s{sKS}, s{sT}, 3")
        e(f"s_and_b32 s{sSUB}, s{sT}, 7")
        e(f"v_lshrrev_b32 v1, 4, v0")
        e(f"v_mul_u32_u24 v6, {4*1152}, v1")
        e(f"v_lshl_add_u32 v6, v{vI}, 2, v6")
        e(f"s_mov_b32 s58, 0x05040100")
        e(f"s_mov_b32 s59, 0x07060302")
    def wo_load(n):
        e(f"s_mul_i32 s{sT}, s{sKS}, {32*1152}")
        e(f"s_lshl_b32 s{sT2}, s{sSUB}, 6")
        e(f"s_add_u32 s{sT}, s{sT}, s{sT2}")
        e(f"s_add_u32 s{sT}, s{sT}, {n*8*64}")
        e(f"s_add_u32 s{sT2}, s{sT}, {16*1152}")
        for jj in range(4):
            e(f"buffer_load_dword v{WT+jj}, v6, {srd(SWO)}, s{sT} offen offset:{jj*1152}")
        for jj in range(4):
            e(f"buffer_load_dword v{WT+4+jj}, v6, {srd(SWO)}, s{sT2} offen offset:{jj*1152}")
    def wo_store(n):
        e("s_waitcnt vmcnt(0)")
        for m in range(4):
            e(f"v_perm_b32 v{WT+8+m}, v{WT+2*m+1}, v{WT+2*m}, s58")
            e(f"v_perm_b32 v{WT+12+m}, v{WT+2*m+1}, v{WT+2*m}, s59")
        e(f"s_add_u32 s{sT}, s{sSUB}, {8*n}")
        e(f"s_lshl_b32 s{sT}, s{sT}, 8")
        e(f"s_add_u32 s{sT}, s{sT}, s{sKS}")
        e(f"s_lshl_b32 s{sT}, s{sT}, 10")
        e(f"s_add_u32 s{sT}, s{sT}, {WS_WO}")
        e(f"s_add_u32 s{sT2}, s{sT}, {128*1024}")
        e(f"buffer_store_dwordx4 {vr(WT+8)}, v26, {srd(SWS)}, s{sT} offen")
        e(f"buffer_store_dwordx4 {vr(WT+12)}, v26, {srd(SWS)}, s{sT2} offen")
        e("s_nop 1")
    def guarded3(fn):
        l = newlab()
        e(f"s_cmp_lt_u32 s{sSUB}, 2")
        e(f"s_cbranch_scc0 {l}")
        fn()
        lab(l)
    for c in range(8):
        cm(f"PV step {c}")
        n = (len(bq) - 1 - bq.index(f"V{c}")) * 4
        role(False, lambda: e(f"s_waitcnt vmcnt({n})"))
        e("s_barrier")
        if c == 0:
            def f(): wo_setup(); wo_load(0)
            role(True, f)
        elif c == 2:
            def f(): wo_store(0); wo_load(1)
            role(True, f)
        elif c == 4:
            def f(): wo_store(1); guarded3(lambda: wo_load(2))
            role(True, f)
        elif c == 6:
            role(True, lambda: guarded3(lambda: wo_store(2)))
        slot = V_SLOT[c]
        for dt in range(8):
            e(f"v_add_u32 v{16+dt}, {slot}, v{8+dt}")
        e(f"v_add_u32 v25, {slot}, v24")
        e(f"v_add_u32 v1, {P9B + c*2048}, v26")
        reads = []; mms = []
        lastuse = {}
        fb = [0]
        for dt in range(8):
            b = fb[0] % NVF; fb[0] += 1
            reg = VF + 4*b
            aft = lastuse.get(b, -1)
            reads.append((f"ds_read_b64_tr_b16 {vr(reg,2)}, v{16+dt}", aft))
            reads.append((f"ds_read_b64_tr_b16 {vr(reg+2,2)}, v{16+dt} offset:4096", aft))
            for qt in range(2):
                d = OA + (dt*2+qt)*4
                cc = vr(d) if c > 0 else "0"
                mms.append((f"v_mfma_f32_16x16x32_bf16 {vr(d)}, {vr(reg)}, {vr(preg(c,qt))}, {cc}", len(reads)-1))
            lastuse[b] = len(mms)-1
            if dt == 0:
                for qt in range(2):
                    d = SM + qt*4
                    cc = vr(d) if c > 0 else "0"
                    mms.append((f"v_mfma_f32_16x16x32_bf16 {vr(d)}, {vr(ONES)}, {vr(preg(c,qt))}, {cc}", len(reads)-1))
        for hh in range(2):
            reads.append((f"ds_read_b64_tr_b16 {vr(V9F+4*hh,2)}, v25 offset:{hh*8192}", -1))
            reads.append((f"ds_read_b64_tr_b16 {vr(V9F+4*hh+2,2)}, v25 offset:{hh*8192+4096}", -1))
            reads.append((f"ds_read_b128 {vr(P9F+4*hh)}, v1 offset:{hh*1024}", -1))
            cc = vr(O9) if (c > 0 or hh > 0) else "0"
            mms.append((f"v_mfma_f32_16x16x32_bf16 {vr(O9)}, {vr(V9F+4*hh)}, {vr(P9F+4*hh)}, {cc}", len(reads)-1))
            cc = vr(SM9) if (c > 0 or hh > 0) else "0"
            mms.append((f"v_mfma_f32_16x16x32_bf16 {vr(SM9)}, {vr(ONES)}, {vr(P9F+4*hh)}, {cc}", len(reads)-1))
        pipe(reads, mms)
    cm("epilogue")
    e("s_barrier")
    e("s_nop 7")
    RS = 9216
    e(f"s_mul_i32 s{sT}, s{sW}, {RS}")
    e(f"v_add_u32 v1, s{sT}, v26")
    e(f"v_lshlrev_b32 v2, 2, v0")
    e(f"v_add_u32 v2, s{sT}, v2")
    e(f"s_xor_b32 s{sT2}, s{sW}, 4")
    e(f"s_mul_i32 s{sT2}, s{sT2}, {RS}")
    e(f"v_add_u32 v3, s{sT2}, v26")
    e(f"v_lshlrev_b32 v4, 2, v0")
    e(f"v_add_u32 v4, s{sT2}, v4")
    def send(qt):
        for dt in range(8):
            e(f"ds_write_b128 v1, {vr(OA+(dt*2+qt)*4)} offset:{dt*1024}")
        e(f"ds_write_b32 v2, v{SM+qt*4} offset:8192")
    def fin(qt):
        RB = 160
        for dt in range(8):
            e(f"ds_read_b128 {vr(RB+dt*4)}, v3 offset:{dt*1024}")
        e(f"ds_read_b32 v{RB+32}, v4 offset:8192")
        e("s_waitcnt lgkmcnt(0)")
        e(f"v_add_f32 v{RB+32}, v{RB+32}, v{SM+qt*4}")
        e(f"v_rcp_f32 v{RB+32}, v{RB+32}")
        for dt in range(8):
            for r in range(4):
                e(f"v_add_f32 v{RB+dt*4+r}, v{RB+dt*4+r}, v{OA+(dt*2+qt)*4+r}")
        for dt in range(8):
            for r in range(4):
                e(f"v_mul_f32 v{RB+dt*4+r}, v{RB+dt*4+r}, v{RB+32}")
        for dt in range(8):
            e(f"v_cvt_pk_bf16_f32 v{RB+dt*2}, v{RB+dt*4}, v{RB+dt*4+1}")
            e(f"v_cvt_pk_bf16_f32 v{RB+dt*2+1}, v{RB+dt*4+2}, v{RB+dt*4+3}")
    l1 = newlab(); l2 = newlab()
    e(f"s_cmp_eq_u32 s{sKH}, 0")
    e(f"s_cbranch_scc0 {l1}")
    send(1)
    e(f"s_branch {l2}")
    lab(l1)
    send(0)
    lab(l2)
    e("s_waitcnt lgkmcnt(0)")
    e("s_barrier")
    l1 = newlab(); l2 = newlab()
    e(f"s_cmp_eq_u32 s{sKH}, 0")
    e(f"s_cbranch_scc0 {l1}")
    fin(0)
    e(f"s_branch {l2}")
    lab(l1)
    fin(1)
    lab(l2)
    e(f"s_mul_i32 s{sT}, s{sB}, 9")
    e(f"s_lshl_b32 s{sT2}, s{sA}, 1")
    e(f"s_add_u32 s{sT2}, s{sT2}, s{sKH}")
    e(f"s_add_u32 s{sT2}, s{sT2}, s{sT}")
    e(f"s_lshl_b32 s{sT2}, s{sT2}, 7")
    e(f"s_lshl_b32 s{sT3}, s{sH}, 2")
    e(f"s_add_u32 s{sT2}, s{sT2}, s{sT3}")
    e(f"s_lshl_b32 s{sT2}, s{sT2}, 10")
    for s in range(4):
        e(f"buffer_store_dwordx4 {vr(160+4*s)}, v26, {srd(SWS)}, s{sT2} offen offset:{s*1024}")
    e(f"v_rcp_f32 v{SM9}, v{SM9}")
    e("s_nop 0")
    for r in range(4):
        e(f"v_mul_f32 v{O9+r}, v{O9+r}, v{SM9}")
    e(f"v_cvt_pk_bf16_f32 v{O9}, v{O9}, v{O9+1}")
    e(f"v_cvt_pk_bf16_f32 v{O9+1}, v{O9+2}, v{O9+3}")
    e(f"s_add_u32 s{sT}, s{sT}, 8")
    e(f"s_lshl_b32 s{sT}, s{sT}, 7")
    e(f"s_add_u32 s{sT}, s{sT}, s{sT3}")
    e(f"s_lshr_b32 s{sT2}, s{sW}, 1")
    e(f"s_add_u32 s{sT}, s{sT}, s{sT2}")
    e(f"s_lshl_b32 s{sT}, s{sT}, 10")
    e(f"s_and_b32 s{sT2}, s{sW}, 1")
    e(f"s_lshl_b32 s{sT2}, s{sT2}, 3")
    e(f"s_add_u32 s{sT}, s{sT}, s{sT2}")
    e(f"buffer_store_dwordx2 {vr(O9,2)}, v26, {srd(SWS)}, s{sT} offen")
    lab(".Lk1_end")
    e("s_endpgm")

LDS2 = 98304
def kernel2():
    L.append(".globl oproj_kernel")
    L.append(".p2align 8")
    L.append(".type oproj_kernel,@function")
    lab("oproj_kernel")
    e("s_cmp_ge_u32 s2, 216")
    e("s_cbranch_scc1 .Lk2_end")
    e("s_load_dwordx2 s[4:5], s[0:1], 40")
    e("s_load_dwordx2 s[6:7], s[0:1], 56")
    e("v_lshrrev_b32 v1, 6, v0")
    e("v_and_b32 v0, 63, v0")
    e(f"v_readfirstlane_b32 s{sW}, v1")
    e("s_and_b32 s8, s2, 7")
    e("s_lshr_b32 s9, s2, 3")
    e("s_mul_i32 s10, s9, 43")
    e("s_lshr_b32 s10, s10, 7")
    e("s_mul_i32 s11, s10, 3")
    e("s_sub_u32 s11, s9, s11")
    e("s_mul_i32 s12, s8, 3")
    e("s_add_u32 s12, s12, s11")
    e("s_waitcnt lgkmcnt(0)")
    SO, SW2 = 20, 24
    e(f"s_mov_b32 s{SO}, s4")
    e(f"s_mov_b32 s{SO+1}, s5")
    e(f"s_mov_b32 s{SO+2}, {1152*576*2}")
    e(f"s_mov_b32 s{SO+3}, 0x00020000")
    e(f"s_mov_b32 s{SW2}, s6")
    e(f"s_mov_b32 s{SW2+1}, s7")
    e(f"s_mov_b32 s{SW2+2}, {WS_SIZE}")
    e(f"s_mov_b32 s{SW2+3}, 0x00020000")
    e("v_lshlrev_b32 v2, 4, v0")
    e(f"s_lshl_b32 s13, s{sW}, 14")
    e("s_mul_i32 s14, s12, 3")
    e("s_lshl_b32 s14, s14, 17")
    e("s_add_u32 s14, s14, s13")
    e("s_lshl_b32 s15, s10, 19")
    e("s_add_u32 s15, s15, s13")
    e(f"s_add_u32 s15, s15, {WS_WO}")
    BASE = 28
    for m in range(3):
        e(f"s_add_u32 s{BASE+m}, s14, {m*131072}")
    for n in range(4):
        e(f"s_add_u32 s{BASE+3+n}, s15, {n*131072}")
    ACC = 8; BUF = 56; DEPTH = 7
    def issue(ks):
        b = BUF + (ks % DEPTH) * 28
        for t in range(7):
            if ks % 4 == 0 and ks > 0:
                e(f"s_add_u32 s{BASE+t}, s{BASE+t}, 4096")
            e(f"buffer_load_dwordx4 {vr(b+4*t)}, v2, {srd(SW2)}, s{BASE+t} offen offset:{(ks%4)*1024}")
    for ks in range(DEPTH): issue(ks)
    for ks in range(16):
        nout = min(15, ks + DEPTH - 1) - ks
        e(f"s_waitcnt vmcnt({nout*7})")
        b = BUF + (ks % DEPTH) * 28
        for m in range(3):
            for n in range(4):
                d = ACC + (m*4+n)*4
                cc = vr(d) if ks > 0 else "0"
                e(f"v_mfma_f32_16x16x32_bf16 {vr(d)}, {vr(b+12+4*n)}, {vr(b+4*m)}, {cc}")
        if ks + DEPTH < 16:
            issue(ks + DEPTH)
    e("s_nop 7")
    e("s_nop 1")
    e(f"s_mul_i32 s13, s{sW}, 12288")
    e("v_add_u32 v3, s13, v2")
    for t in range(12):
        e(f"ds_write_b128 v3, {vr(ACC+4*t)} offset:{t*1024}")
    e("s_waitcnt lgkmcnt(0)")
    e("s_barrier")
    e(f"s_cmp_ge_u32 s{sW}, 6")
    e("s_cbranch_scc1 .Lk2_end")
    e(f"s_lshl_b32 s13, s{sW}, 11")
    e("v_add_u32 v3, s13, v2")
    e("v_add_u32 v4, 49152, v3")
    RB = 64
    for wv in range(8):
        a = "v3" if wv < 4 else "v4"
        o = (wv % 4) * 12288
        e(f"ds_read_b128 {vr(RB+wv*8)}, {a} offset:{o}")
        e(f"ds_read_b128 {vr(RB+wv*8+4)}, {a} offset:{o+1024}")
    e("s_waitcnt lgkmcnt(0)")
    for wv in range(1, 8):
        for k in range(8):
            e(f"v_add_f32 v{RB+k}, v{RB+k}, v{RB+wv*8+k}")
    for r in range(4):
        e(f"v_cvt_pk_bf16_f32 v{8+r}, v{RB+r}, v{RB+4+r}")
    e(f"s_lshr_b32 s13, s{sW}, 1")
    e("s_mul_i32 s14, s12, 3")
    e("s_add_u32 s13, s13, s14")
    e(f"s_mul_i32 s13, s13, {16*1152}")
    e("s_lshl_b32 s14, s10, 7")
    e("s_add_u32 s13, s13, s14")
    e(f"s_and_b32 s14, s{sW}, 1")
    e("s_lshl_b32 s14, s14, 6")
    e("s_add_u32 s13, s13, s14")
    e("v_and_b32 v5, 15, v0")
    e("v_mul_u32_u24 v5, 1152, v5")
    e("v_lshrrev_b32 v6, 4, v0")
    e("v_lshl_add_u32 v5, v6, 4, v5")
    e(f"buffer_store_dwordx4 {vr(8)}, v5, {srd(SO)}, s13 offen")
    lab(".Lk2_end")
    e("s_endpgm")

def desc(name, vg, sg):
    return f""".amdhsa_kernel {name}
  .amdhsa_next_free_vgpr {vg}
  .amdhsa_next_free_sgpr {sg}
  .amdhsa_accum_offset {vg}
  .amdhsa_group_segment_fixed_size 0
  .amdhsa_kernarg_size 64
  .amdhsa_user_sgpr_count 2
  .amdhsa_user_sgpr_kernarg_segment_ptr 1
  .amdhsa_system_sgpr_workgroup_id_x 1
.end_amdhsa_kernel"""

def main(out):
    hdr = open("standalone__mha_block_cached__near_ridge.s.ref").read().split("\n")
    top = [l for l in hdr if l.startswith(";") and "@launch" not in l and "Override" not in l and "grid=ceil" not in l]
    L.extend(top)
    L.append(f"; @launch kernel=attn_kernel grid=(256,1,1) block=(512,1,1) lds={LDS1}")
    L.append(f"; @launch kernel=oproj_kernel grid=(216,1,1) block=(512,1,1) lds={LDS2}")
    L.append('.amdgcn_target "amdgcn-amd-amdhsa--gfx950"')
    L.append(".text")
    kernel1()
    kernel2()
    L.append('.section .rodata,"a"')
    L.append(".p2align 6")
    L.append(desc("attn_kernel", 256, 64))
    L.append(".p2align 6")
    L.append(desc("oproj_kernel", 256, 64))
    open(out, "w").write("\n".join(L) + "\n")

if __name__ == "__main__":
    main(sys.argv[1] if len(sys.argv) > 1 else "standalone__mha_block_cached__near_ridge.s")
```
